```python
import torch

def _softmax(x, axis=-1):
    return torch.softmax(x, dim=axis)
def _gelu(x):
    return torch.nn.functional.gelu(x, approximate="tanh")
def _silu(x):
    return torch.nn.functional.silu(x)
def _sigmoid(x):
    return torch.sigmoid(x)
def _layernorm(x, axis=-1, eps=1e-5):
    m = x.mean(dim=axis, keepdim=True)
    v = x.var(dim=axis, keepdim=True, unbiased=False)
    return (x - m) / torch.sqrt(v + eps)
def _scatter_add(tgt, idx, src, axis=0):
    return tgt.clone().index_add_(axis, idx, src)
def _segment_sum(src, seg, n):
    out = torch.zeros((n,) + src.shape[1:], dtype=src.dtype)
    return out.index_add_(0, seg, src)
def _pad(x, pw):
    flat = tuple(v for pair in reversed(pw) for v in pair)
    return torch.nn.functional.pad(x, flat)

kernel_name = 'concat_heads__mha_block_cached__mha_block_cached__near_ridge'

def setup_inputs():

    _w = (lambda a: (lambda t: t.to(torch.bfloat16) if t.is_floating_point() else t)(torch.as_tensor(a)))
    def _A_setup():
        B, Sq, D = 8, 192, 576
        H, Sk, Dh = 32, 512, 128
        return {
            "x": _w((lambda *s: torch.randn(*s, dtype=torch.bfloat16) * 0.8)(B, Sq, D)),
            "k_cache": _w((lambda *s: torch.randn(*s, dtype=torch.bfloat16) * 0.8)(B, H, Sk, Dh)),
            "v_cache": _w((lambda *s: torch.randn(*s, dtype=torch.bfloat16) * 0.05)(B, H, Sk, Dh)),
            "wq": _w((lambda *s: torch.randn(*s, dtype=torch.bfloat16) * 0.8)(D, H * Dh) * (D ** -0.5)),
            "wo": _w((lambda *s: torch.randn(*s, dtype=torch.bfloat16) * 0.05)(H * Dh, D) * ((H * Dh) ** -0.5)),
        }
    _A_in = _A_setup()

    def _B_setup():
        B, Sq, D = 8, 192, 576
        H, Sk, Dh = 32, 512, 128
        return {
            "x": _w((lambda *s: torch.randn(*s, dtype=torch.bfloat16) * 0.8)(B, Sq, D)),
            "k_cache": _w((lambda *s: torch.randn(*s, dtype=torch.bfloat16) * 0.8)(B, H, Sk, Dh)),
            "v_cache": _w((lambda *s: torch.randn(*s, dtype=torch.bfloat16) * 0.05)(B, H, Sk, Dh)),
            "wq": _w((lambda *s: torch.randn(*s, dtype=torch.bfloat16) * 0.8)(D, H * Dh) * (D ** -0.5)),
            "wo": _w((lambda *s: torch.randn(*s, dtype=torch.bfloat16) * 0.05)(H * Dh, D) * ((H * Dh) ** -0.5)),
        }
    _B_in = _B_setup()

    return {
        "A_x": _A_in["x"],
        "A_k_cache": _A_in["k_cache"],
        "A_v_cache": _A_in["v_cache"],
        "A_wq": _A_in["wq"],
        "A_wo": _A_in["wo"],
        "B_x": _B_in["x"],
        "B_k_cache": _B_in["k_cache"],
        "B_v_cache": _B_in["v_cache"],
        "B_wq": _B_in["wq"],
        "B_wo": _B_in["wo"],
    }

def reference(A_x, A_k_cache, A_v_cache, A_wq, A_wo, B_x, B_k_cache, B_v_cache, B_wq, B_wo):
    def _A_ref(x, k_cache, v_cache, wq, wo):
        B, Sq, D = x.shape
        H, Dh = 32, 128
        q = (lambda x, *d: x.permute(*d))((x @ wq).reshape(B, Sq, H, Dh), 0, 2, 1, 3)
        scores = torch.einsum("bhqd,bhkd->bhqk", q, k_cache) * (Dh ** -0.5)
        p = _softmax(scores, axis=-1)
        o = torch.einsum("bhqk,bhkd->bhqd", p, v_cache)
        return (lambda x, *d: x.permute(*d))(o, 0, 2, 1, 3).reshape(B, Sq, H * Dh) @ wo

    def _B_ref(x, k_cache, v_cache, wq, wo):
        B, Sq, D = x.shape
        H, Dh = 32, 128
        q = (lambda x, *d: x.permute(*d))((x @ wq).reshape(B, Sq, H, Dh), 0, 2, 1, 3)
        scores = torch.einsum("bhqd,bhkd->bhqk", q, k_cache) * (Dh ** -0.5)
        p = _softmax(scores, axis=-1)
        o = torch.einsum("bhqk,bhkd->bhqd", p, v_cache)
        return (lambda x, *d: x.permute(*d))(o, 0, 2, 1, 3).reshape(B, Sq, H * Dh) @ wo

    a = _A_ref(A_x, A_k_cache, A_v_cache, A_wq, A_wo)
    b = _B_ref(B_x, B_k_cache, B_v_cache, B_wq, B_wo)
    return torch.concatenate([a, b], axis=-1)
```

```python
import re

def R(kind, start, n=1):
    if n == 1:
        return f'{kind}{start}'
    return f'{kind}[{start}:{start+n-1}]'

def regs_of(op):
    if not isinstance(op, str):
        return []
    op = op.strip()
    neg = op.lstrip('-')
    m = re.fullmatch(r'([vas])\[(\d+):(\d+)\]', neg)
    if m:
        return [f'{m.group(1)}{i}' for i in range(int(m.group(2)), int(m.group(3)) + 1)]
    m = re.fullmatch(r'([vas])(\d+)', neg)
    if m:
        return [neg]
    if neg in ('vcc', 'm0', 'exec'):
        return [neg]
    return []

class Ins:
    __slots__ = ('text', 'kind', 'reads', 'writes', 'srcc', 'ws')
    def __init__(self, text, kind, reads=(), writes=(), srcc=(), ws=1):
        self.text = text; self.kind = kind
        self.reads = set(reads); self.writes = set(writes); self.srcc = set(srcc); self.ws = ws

TRANS = ('v_exp_f32', 'v_rcp_f32', 'v_log_f32', 'v_rsq_f32', 'v_sqrt_f32')

class Emitter:
    def __init__(self):
        self.lines = []
        self.hist = []
        self.vm = []
        self.lg = []
        self.nnop = 0
        self.ninst = 0
        self.check = True

    def raw(self, text):
        self.lines.append(text)
    def comment(self, c):
        self.lines.append(f'    ; {c}')
    def label(self, l):
        self.lines.append(f'{l}:')
    def reset_hist(self):
        self.hist = []

    def _dist(self, pred):
        d = 0
        for ins in reversed(self.hist):
            if pred(ins):
                return d
            d += ins.ws
            if d > 24:
                break
        return 99

    def _need(self, ins):
        need = 0
        rd, wr = ins.reads, ins.writes
        k = ins.kind
        isvalu = k in ('valu', 'trans', 'perm')
        def upd(req, pred):
            nonlocal need
            d = self._dist(pred)
            if d < req:
                need = max(need, req - d)
        vregs_rd = {r for r in rd if r[0] in 'va' and r != 'vcc'}
        vregs_wr = {r for r in wr if r[0] in 'va' and r != 'vcc'}
        if k == 'mfma':
            upd(2, lambda p: p.kind in ('valu', 'trans', 'perm') and (p.writes & vregs_rd))
            ab = vregs_rd - ins.srcc
            upd(8, lambda p: p.kind == 'mfma' and (p.writes & ab))
            upd(6, lambda p: p.kind == 'mfma' and (p.writes & ins.srcc) and p.writes != ins.srcc)
            upd(4, lambda p: p.kind in ('valu',) and 'exec' in p.writes)
        if isvalu or k in ('vmem_ld', 'vmem_st', 'dma', 'ds_rd', 'ds_wr'):
            upd(8, lambda p: p.kind == 'mfma' and (p.writes & (vregs_rd | vregs_wr)))
        if isvalu:
            upd(3, lambda p: p.kind == 'mfma' and (p.srcc & vregs_wr))
            if k != 'trans':
                upd(1, lambda p: p.kind == 'trans' and (p.writes & vregs_rd))
            srd = {r for r in rd if r[0] == 's' or r == 'vcc'}
            upd(2, lambda p: p.kind in ('valu', 'trans', 'perm') and (p.writes & srd))
            upd(2, lambda p: p.kind in ('vmem_st',) and (p.reads & vregs_wr))
        if k == 'perm':
            upd(2, lambda p: p.kind in ('valu', 'trans', 'perm') and (p.writes & vregs_rd))
        if k == 'rfl':
            upd(1, lambda p: p.kind in ('valu', 'trans', 'perm') and (p.writes & vregs_rd))
            upd(8, lambda p: p.kind == 'mfma' and (p.writes & vregs_rd))
        if k in ('vmem_ld', 'vmem_st', 'dma'):
            srd = {r for r in rd if r[0] == 's'}
            upd(5, lambda p: p.kind in ('valu', 'trans', 'perm', 'rfl') and (p.writes & srd))
        if k == 'dma':
            upd(1, lambda p: p.kind == 'salu' and 'm0' in p.writes)
        if k in ('ds_rd', 'vmem_ld'):
            upd(1, lambda p: p.kind == 'vmem_st' and (p.reads & vregs_wr))
        if k == 'salu':
            srd = {r for r in rd if r[0] == 's' or r == 'vcc'}
            upd(4, lambda p: p.kind in ('valu', 'rfl') and (p.writes & srd))
        return need

    def ins(self, text, kind, reads=(), writes=(), srcc=()):
        i = Ins(text, kind, reads, writes, srcc)
        if self.check:
            n = self._need(i)
            if n > 0:
                self.nop(n)
        self.lines.append('    ' + text)
        self.hist.append(i)
        if len(self.hist) > 40:
            self.hist = self.hist[-30:]
        self.ninst += 1
        return i

    def nop(self, n):
        self.nnop += 1
        while n > 0:
            m = min(n, 16)
            i = Ins(f's_nop {m-1}', 'nop', ws=m)
            self.lines.append('    ' + i.text)
            self.hist.append(i)
            n -= m

    def salu(self, op, dst, *src, extra_w=(), extra_r=()):
        w = regs_of(dst) if dst is not None else []
        r = [x for s in src for x in regs_of(s)]
        ops = ([dst] if dst is not None else []) + [str(s) for s in src]
        return self.ins(f'{op} ' + ', '.join(ops), 'salu', r + list(extra_r), w + list(extra_w))
    def scmp(self, op, a, b):
        return self.ins(f'{op} {a}, {b}', 'salu', regs_of(str(a)) + regs_of(str(b)), [])
    def valu(self, op, dst, *src, mods=''):
        w = regs_of(dst)
        r = [x for s in src for x in regs_of(str(s))]
        kind = 'trans' if op in TRANS else 'valu'
        if op.startswith('v_fmac') or op.startswith('v_accvgpr_write') is None:
            r += w
        if op.startswith('v_cndmask') and len(src) == 2:
            r.append('vcc')
        t = f'{op} {dst}, ' + ', '.join(str(s) for s in src) + (' ' + mods if mods else '')
        return self.ins(t, kind, r, w)
    def vcmp(self, op, dst, a, b):
        return self.ins(f'{op} {dst}, {a}, {b}', 'valu', regs_of(str(a)) + regs_of(str(b)), regs_of(dst))
    def rfl(self, sdst, vsrc):
        return self.ins(f'v_readfirstlane_b32 {sdst}, {vsrc}', 'rfl', regs_of(vsrc), regs_of(sdst))
    def perm(self, op, a, b):
        rr = regs_of(a) + regs_of(b)
        return self.ins(f'{op} {a}, {b}', 'perm', rr, rr)
    def mfma(self, d, a, b, c):
        cr = regs_of(c) if isinstance(c, str) else []
        return self.ins(f'v_mfma_f32_16x16x32_bf16 {d}, {a}, {b}, {c}', 'mfma', regs_of(a) + regs_of(b) + cr, regs_of(d), cr)
    def ds_read(self, op, dst, addr, off, tag):
        t = f'{op} {dst}, {addr}' + (f' offset:{off}' if off else '')
        assert 0 <= off < 65536, off
        self.ins(t, 'ds_rd', regs_of(addr), regs_of(dst))
        self.lg.append(tag)
        assert len(self.lg) <= 15 or True
    def ds_write(self, op, addr, src, off, tag):
        t = f'{op} {addr}, {src}' + (f' offset:{off}' if off else '')
        assert 0 <= off < 65536, off
        self.ins(t, 'ds_wr', regs_of(addr) + regs_of(src), [])
        self.lg.append(tag)
    def wait_lg(self, tag):
        idx = [i for i, t in enumerate(self.lg) if t == tag]
        if not idx:
            return
        n = len(self.lg) - 1 - idx[-1]
        assert n <= 15, ('lgkm', n)
        self.ins(f's_waitcnt lgkmcnt({n})', 'wait')
        self.lg = self.lg[idx[-1] + 1:]
    def wait_lg_all(self):
        self.ins('s_waitcnt lgkmcnt(0)', 'wait'); self.lg = []
    def dma(self, vaddr, srd, soff, off, tag, pol=''):
        t = f'buffer_load_dwordx4 {vaddr}, {srd}, {soff} offen' + (f' offset:{off}' if off else '') + (f' {pol}' if pol else '') + ' lds'
        assert 0 <= off < 4096
        self.ins(t, 'dma', regs_of(vaddr) + regs_of(srd) + regs_of(str(soff)) + ['m0'], [])
        self.vm.append(tag)
    def vload(self, op, dst, vaddr, srd, soff, off, tag, pol=''):
        t = f'{op} {dst}, {vaddr}, {srd}, {soff} offen' + (f' offset:{off}' if off else '') + (f' {pol}' if pol else '')
        assert 0 <= off < 4096
        self.ins(t, 'vmem_ld', regs_of(vaddr) + regs_of(srd) + regs_of(str(soff)), regs_of(dst))
        self.vm.append(tag)
    def vstore(self, op, src, vaddr, srd, soff, off, tag, pol=''):
        t = f'{op} {src}, {vaddr}, {srd}, {soff} offen' + (f' offset:{off}' if off else '') + (f' {pol}' if pol else '')
        assert 0 <= off < 4096
        self.ins(t, 'vmem_st', regs_of(src) + regs_of(vaddr) + regs_of(srd) + regs_of(str(soff)), [])
        self.vm.append(tag)
    def wait_vm(self, *tags):
        idx = [i for i, t in enumerate(self.vm) if t in tags]
        if not idx:
            return
        n = len(self.vm) - 1 - idx[-1]
        assert n <= 63, ('vm', n)
        self.ins(f's_waitcnt vmcnt({n})', 'wait')
        self.vm = self.vm[idx[-1] + 1:]
    def wait_vm_all(self):
        self.ins('s_waitcnt vmcnt(0)', 'wait'); self.vm = []
    def barrier(self):
        self.ins('s_barrier', 'bar')
    def text(self):
        return '\n'.join(self.lines) + '\n'
```

```python
from emit import Emitter, R
import struct

def f32hex(x):
    return '0x%08x' % struct.unpack('<I', struct.pack('<f', x))[0]

WS_OF = 0
WS_WF = 0x1800000
WS_OF_BYTES = 0x1800000
WS_WF_BYTES = 2 * 128 * 36 * 1024

ACC = 0
S0 = 96
P0 = 120
Q0 = 144
VT = 192
VK = 200
VW = 204
VKV0 = 205
VKV1 = 206
VL = 207
AL = 0
AONE = 12
AK = 16
AV = 32
def acc(j, u): return R('v', ACC + (8*j + u)*4, 4)
def sreg(j, t): return S0 + (2*j + t)*4
def preg(buf, j): return P0 + (buf*3 + j)*4
def qreg(j, s): return Q0 + (4*j + s)*4
def xf(par, j): return R('v', S0 + (par*3 + j)*4, 4)
def wbuf(F): return P0 + (F % 6)*4
def kbuf(F): return AK + (F % 4)*4
def vbuf(u): return AV + (u % 4)*4

sWV = 's3'; sBR = 's4'; sB = 's5'; sH = 's6'; sT = 's7'
SX = 's[36:39]'; SW = 's[40:43]'; SK = 's[44:47]'; SV = 's[48:51]'; SO = 's[52:55]'; SWO = 's[56:59]'; SWF = 's[60:63]'
sW2K = 's64'; sW6K = 's65'; sOFF = 's66'; sOFF2 = 's67'; sSC = 's68'; sBAD = 's69'; sRETRY = 's70'; sLO = 's71'; sHI='s72'; sI='s73'; sOFF3='s74'

KRING = [2, 7, 3, 0, 1]
VRING = [8, 9, 4, 5, 6]
VBIAS = 16384
XSLOT = [32768, 32768 + 24576]
FLAG_LDS = KRING[14 % 5] * 8192

class Cfg:
    pol_x = ''; pol_w = ''; pol_kv = 'nt'; pol_o = ''; pol_wo = 'nt'; pol_wf = ''
    prio = None
    stamp = False

def prologue(e, cfg, name):
    e.raw(f'{name}:')
    e.scmp('s_cmp_ge_u32', 's2', 512); e.raw('    s_cbranch_scc1 L_k1_done')
    e.raw('    s_load_dwordx4 s[8:11], s[0:1], 0')
    e.raw('    s_load_dwordx4 s[12:15], s[0:1], 16')
    e.raw('    s_load_dwordx2 s[16:17], s[0:1], 32')
    e.raw('    s_load_dwordx4 s[20:23], s[0:1], 40')
    e.raw('    s_load_dwordx4 s[24:27], s[0:1], 56')
    e.raw('    s_load_dwordx2 s[28:29], s[0:1], 72')
    e.raw('    s_load_dwordx2 s[30:31], s[0:1], 96')
    e.valu('v_lshrrev_b32', 'v1', 6, 'v0')
    e.valu('v_and_b32', f'v{VL}', 63, 'v0')
    e.rfl(sWV, 'v1')
    e.salu('s_lshr_b32', sBR, 's2', 8)
    e.salu('s_and_b32', sT, 's2', 7)
    e.salu('s_lshr_b32', 's32', 's2', 3)
    e.salu('s_and_b32', 's32', 's32', 31)
    e.salu('s_and_b32', sB, sT, 1)
    e.salu('s_lshl_b32', sB, sB, 2)
    e.salu('s_and_b32', 's33', 's32', 3)
    e.salu('s_add_u32', sB, sB, 's33')
    e.salu('s_lshr_b32', sH, sT, 1)
    e.salu('s_lshl_b32', sH, sH, 3)
    e.salu('s_lshr_b32', 's33', 's32', 2)
    e.salu('s_add_u32', sH, sH, 's33')
    e.salu('s_lshl_b32', sW2K, sWV, 11)
    e.salu('s_mul_i32', sW6K, sWV, 6144)
    if cfg.prio is not None:
        e.scmp('s_cmp_eq_u32', sBR, 0)
        e.raw('    s_cbranch_scc0 L_k1_noprio')
        e.raw(f'    s_setprio {cfg.prio}')
        e.raw('L_k1_noprio:')
    L = f'v{VL}'
    e.valu('v_lshrrev_b32', 'v2', 4, L)
    e.valu('v_and_b32', 'v3', 15, L)
    e.salu('s_and_b32', 's33', sWV, 1)
    e.salu('s_lshl_b32', 's33', 's33', 2)
    e.valu('v_or_b32', 'v4', 's33', 'v2')
    e.valu('v_lshlrev_b32', 'v4', 1, 'v4')
    e.valu('v_xor_b32', 'v4', 'v3', 'v4')
    e.valu('v_lshlrev_b32', 'v4', 4, 'v4')
    e.salu('s_lshl_b32', 's33', sWV, 3)
    e.valu('v_add_u32', 'v5', 's33', 'v2')
    e.valu('v_lshlrev_b32', 'v6', 13, 'v5')
    e.valu('v_add_u32', f'v{VW}', 'v6', 'v4')
    e.valu('v_lshlrev_b32', 'v6', 8, 'v5')
    e.valu('v_lshlrev_b32', 'v7', 1, 'v2')
    e.valu('v_xor_b32', 'v8', 'v3', 'v7')
    e.valu('v_lshlrev_b32', 'v8', 4, 'v8')
    e.valu('v_add_u32', f'v{VKV0}', 'v6', 'v8')
    e.valu('v_or_b32', 'v7', 8, 'v7')
    e.valu('v_xor_b32', 'v8', 'v3', 'v7')
    e.valu('v_lshlrev_b32', 'v8', 4, 'v8')
    e.valu('v_add_u32', f'v{VKV1}', 'v6', 'v8')
    e.valu('v_lshrrev_b32', 'v6', 3, L)
    e.salu('s_mul_i32', 's33', sWV, 48)
    e.valu('v_add_u32', 'v6', 's33', 'v6')
    e.valu('v_mul_u32_u24', 'v6', 1152, 'v6')
    e.valu('v_and_b32', 'v7', 7, L)
    e.valu('v_xor_b32', 'v8', 'v7', 'v2')
    e.valu('v_lshlrev_b32', 'v8', 4, 'v8')
    e.valu('v_add_u32', f'v{VK+2}', 'v6', 'v8')
    e.valu('v_or_b32', 'v9', 4, 'v2')
    e.valu('v_xor_b32', 'v8', 'v7', 'v9')
    e.valu('v_lshlrev_b32', 'v8', 4, 'v8')
    e.valu('v_add_u32', 'v8', 'v6', 'v8')
    e.valu('v_add_u32', f'v{VK+3}', 8*1152 - 1024, 'v8')
    e.valu('v_and_b32', 'v6', 3, L)
    e.valu('v_lshrrev_b32', 'v7', 2, L)
    e.valu('v_and_b32', 'v7', 3, 'v7')
    e.valu('v_lshlrev_b32', 'v8', 3, 'v2')
    e.valu('v_add_u32', 'v8', 'v8', 'v7')
    e.valu('v_lshlrev_b32', 'v8', 8, 'v8')
    e.valu('v_and_b32', 'v9', 1, 'v2')
    e.valu('v_lshlrev_b32', 'v9', 2, 'v9')
    e.valu('v_or_b32', 'v9', 'v9', 'v7')
    e.valu('v_lshlrev_b32', 'v9', 5, 'v9')
    e.valu('v_lshlrev_b32', 'v10', 3, 'v6')
    e.valu('v_add3_u32', 'v8', 'v8', 'v9', 'v10')
    for u in range(8):
        if u == 0: e.valu('v_mov_b32', f'v{VT}', 'v8')
        else: e.valu('v_xor_b32', f'v{VT+u}', 32*u, 'v8')
    e.valu('v_lshrrev_b32', 'v6', 1, 'v3')
    e.valu('v_xor_b32', 'v6', 'v6', 'v2')
    e.valu('v_lshlrev_b32', 'v6', 4, 'v6')
    e.valu('v_lshlrev_b32', 'v7', 7, 'v3')
    e.valu('v_add3_u32', 'v6', 'v6', 'v7', sW6K)
    e.valu('v_mov_b32', f'v{VK}', 'v6')
    e.valu('v_xor_b32', f'v{VK+1}', 64, 'v6')
    e.ins('s_waitcnt lgkmcnt(0)', 'wait')
    e.scmp('s_cmp_eq_u32', sBR, 0)
    for d, a, b in ((8, 8, 20), (10, 10, 22), (12, 12, 24), (14, 14, 26), (16, 16, 28)):
        e.salu('s_cselect_b32', f's{d}', f's{a}', f's{b}')
        e.salu('s_cselect_b32', f's{d+1}', f's{a+1}', f's{b+1}')
    def srd(base, lo, hi, offreg, size):
        if offreg is None:
            e.salu('s_mov_b32', f's{base}', f's{lo}'); e.salu('s_mov_b32', f's{base+1}', f's{hi}')
        else:
            e.salu('s_add_u32', f's{base}', f's{lo}', offreg)
            e.salu('s_addc_u32', f's{base+1}', f's{hi}', 0)
        if isinstance(size, int): e.salu('s_mov_b32', f's{base+2}', hex(size))
        else: e.salu('s_mov_b32', f's{base+2}', size)
        e.salu('s_mov_b32', f's{base+3}', '0x20000')
    e.salu('s_mul_i32', sT, sB, 221184); srd(36, 8, 9, sT, 221184)
    e.salu('s_lshl_b32', sT, sH, 8); e.salu('s_sub_u32', 's33', 4718592, sT); srd(40, 14, 15, sT, 's33')
    e.salu('s_lshl_b32', sT, sB, 5); e.salu('s_add_u32', sT, sT, sH); e.salu('s_lshl_b32', sT, sT, 17)
    srd(44, 10, 11, sT, 131072); srd(48, 12, 13, sT, 131072)

def dma_W(e, cfg, s):
    slot = (s % 4) * 8192
    e.salu('s_add_u32', 'm0', sW2K, slot)
    e.salu('s_mov_b32', sOFF, s * 262144)
    e.dma(f'v{VW}', SW, sOFF, 0, ('W', s), cfg.pol_w)
    yield
    e.salu('s_mov_b32', sOFF2, s * 262144 + 32768 - 1024)
    e.dma(f'v{VW}', SW, sOFF2, 1024, ('W', s), cfg.pol_w)
    yield

def dma_X(e, cfg, t):
    base = XSLOT[t % 2]
    for k in range(3):
        if k == 0: e.salu('s_add_u32', 'm0', sW6K, base)
        if k == 2: e.salu('s_add_u32', 'm0', sW6K, base + 4096)
        io = 2048 if k == 1 else 0
        e.salu('s_mov_b32', sOFF3, t * 128 + k * 18432 - io)
        e.dma(f'v{VK+2}', SX, sOFF3, io, ('X', t), cfg.pol_x)
        yield
        e.dma(f'v{VK+3}', SX, sOFF3, io + 1024, ('X', t), cfg.pol_x)
        yield

def dma_KV(e, cfg, kind, i):
    slot = (KRING if kind == 'K' else VRING)[i % 5] * 8192
    srd = SK if kind == 'K' else SV
    e.salu('s_add_u32', 'm0', sW2K, slot)
    if i == 0:
        so = 0
    else:
        so = sOFF if kind == 'K' else sOFF2
        e.salu('s_mov_b32', so, i * 8192)
    e.dma(f'v{VKV0}', srd, so, 0, (kind, i), cfg.pol_kv)
    yield
    e.dma(f'v{VKV1}', srd, so, 1024, (kind, i), cfg.pol_kv)
    yield

def run(gen):
    for _ in gen: pass

def chain(*gens):
    for g in gens:
        for _ in g: yield

def read_W(e, s, u):
    F = 8*s + u; b = wbuf(F); slot = (s % 4) * 8192
    e.ds_read('ds_read_b64_tr_b16', R('v', b, 2), f'v{VT+u}', slot, ('Wf', F)); yield
    e.ds_read('ds_read_b64_tr_b16', R('v', b+2, 2), f'v{VT+u}', slot + 1024, ('Wf', F)); yield

def read_x(e, s):
    t = s // 2; hs = s % 2
    for j in range(3):
        e.ds_read('ds_read_b128', xf(s % 2, j), f'v{VK+hs}', XSLOT[t % 2] + j*2048, ('xf', s, j)); yield

def read_K(e, i, F):
    t, s = divmod(F, 4)
    slot = KRING[i % 5] * 8192
    e.ds_read('ds_read_b128', R('a', kbuf(F), 4), f'v{VK+s}', slot + t*4096, ('Kf', i, F)); yield

def read_V(e, i, u):
    slot = VRING[i % 5] * 8192 - VBIAS; b = vbuf(u)
    e.ds_read('ds_read_b64_tr_b16', R('a', b, 2), f'v{VT+u}', slot, ('Vf', i, u)); yield
    e.ds_read('ds_read_b64_tr_b16', R('a', b+2, 2), f'v{VT+u}', slot + 4096, ('Vf', i, u)); yield

def step(g):
    try:
        next(g); return True
    except StopIteration:
        return False

class Fill:
    def __init__(self): self.at = {}
    def add(self, pos, gen, n=1): self.at.setdefault(pos, []).append((gen, n))
    def emit(self, pos):
        for gen, n in self.at.get(pos, []):
            for _ in range(n): step(gen)
    def spread(self, gen, positions):
        for p in positions: self.add(p, gen, 1)

def qproj_body(e, cfg, s):
    e.comment(f'---- Q-proj stage {s}')
    if s + 1 <= 17: e.wait_vm(('W', s + 1))
    if s in (15, 17): e.wait_lg_all()
    e.barrier()
    f = Fill()
    dmas = []
    n = 0
    if s + 3 <= 17: dmas.append(dma_W(e, cfg, s + 3)); n += 2
    if s % 2 == 1 and (s + 3)//2 <= 8: dmas.append(dma_X(e, cfg, (s + 3)//2)); n += 6
    if s == 15:
        dmas += [dma_KV(e, cfg, 'K', 0), dma_KV(e, cfg, 'K', 1), dma_KV(e, cfg, 'V', 0), dma_KV(e, cfg, 'V', 1)]; n += 8
    if s == 16:
        dmas += [dma_KV(e, cfg, 'K', 2)]; n += 2
    if s == 17:
        dmas += [dma_KV(e, cfg, 'K', 3), dma_KV(e, cfg, 'V', 2), dma_KV(e, cfg, 'V', 3)]; n += 6
    dg = chain(*dmas)
    pos = [p for p in range(24) if p not in (9, 10, 11)]
    f.spread(dg, pos[:n])
    for u in range(8):
        uu = u + 4
        if uu < 8: g = read_W(e, s, uu)
        elif s + 1 <= 17: g = read_W(e, s + 1, uu - 8)
        else: continue
        f.add(3*u, g); f.add(3*u + 1, g)
    if s + 1 <= 17:
        xg = read_x(e, s + 1)
        def xw():
            if (s + 1) % 2 == 0: e.wait_vm(('X', (s + 1)//2))
            yield
        f.add(8, xw())
        f.spread(xg, [9, 10, 11])
    if s == 17:
        f.spread(attn_addr_K(e), range(2, 12))
        f.spread(attn_addr_V(e), range(12, 24))
    for m in range(24):
        u, j = divmod(m, 3)
        if j == 0: e.wait_lg(('Wf', 8*s + u))
        if u == 0: e.wait_lg(('xf', s, j))
        c = 0 if s == 0 else acc(j, u)
        e.mfma(acc(j, u), R('v', wbuf(8*s + u), 4), xf(s % 2, j), c)
        f.emit(m)

def attn_addr_K(e):
    L = f'v{VL}'
    e.valu('v_and_b32', 'v96', 15, L); yield
    e.valu('v_lshrrev_b32', 'v97', 4, L); yield
    e.valu('v_and_b32', 'v98', 7, L); yield
    e.valu('v_lshlrev_b32', 'v98', 1, 'v98'); yield
    e.valu('v_xor_b32', 'v98', 'v98', 'v97'); yield
    e.valu('v_lshlrev_b32', 'v98', 4, 'v98'); yield
    e.valu('v_lshl_add_u32', f'v{VK}', 'v96', 8, 'v98'); yield
    e.valu('v_xor_b32', f'v{VK+1}', 64, f'v{VK}'); yield
    e.valu('v_xor_b32', f'v{VK+2}', 128, f'v{VK}'); yield
    e.valu('v_xor_b32', f'v{VK+3}', 192, f'v{VK}'); yield

def attn_addr_V(e):
    L = f'v{VL}'
    e.valu('v_lshrrev_b32', 'v96', 2, L); yield
    e.valu('v_and_b32', 'v97', 7, 'v96'); yield
    e.valu('v_lshlrev_b32', 'v97', 5, 'v97')
    e.valu('v_and_b32', 'v98', 3, L); yield
    e.valu('v_lshlrev_b32', 'v98', 3, 'v98')
    e.valu('v_lshlrev_b32', 'v96', 8, 'v96'); yield
    e.valu('v_add3_u32', f'v{VT}', 'v96', 'v97', 'v98')
    e.valu('v_add_u32', f'v{VT}', VBIAS, f'v{VT}'); yield
    for u in range(1, 8):
        e.valu('v_xor_b32', f'v{VT+u}', 32*u, f'v{VT}'); yield

def q_epilogue(e):
    e.comment('---- Q epilogue: scale, pack, permute')
    e.salu('s_mov_b32', sSC, f32hex(1.4426950408889634 * 128 ** -0.5))
    for j in range(3):
        for s in range(4):
            base = ACC + (8*j + 2*s)*4
            q = qreg(j, s)
            for r in range(8): e.valu('v_mul_f32', f'v{base+r}', sSC, f'v{base+r}')
            for r in range(4): e.valu('v_cvt_pk_bf16_f32', f'v{q+r}', f'v{base+2*r}', f'v{base+2*r+1}')
    for j in range(3):
        for s in range(4):
            q = qreg(j, s)
            e.perm('v_permlane32_swap_b32', f'v{q}', f'v{q+2}')
            e.perm('v_permlane32_swap_b32', f'v{q+1}', f'v{q+3}')
        for s in range(4):
            q = qreg(j, s)
            e.perm('v_permlane16_swap_b32', f'v{q}', f'v{q+2}')
            e.perm('v_permlane16_swap_b32', f'v{q+1}', f'v{q+3}')

def softmax_half(e, t, buf):
    for j in range(3):
        s = sreg(j, t); p = preg(buf, j) + 2*t
        for r in range(4):
            e.valu('v_exp_f32', f'v{s+r}', f'v{s+r}'); yield
        e.valu('v_cvt_pk_bf16_f32', f'v{p}', f'v{s}', f'v{s+1}'); yield
        e.valu('v_cvt_pk_bf16_f32', f'v{p+1}', f'v{s+2}', f'v{s+3}'); yield

def part_A(e, cfg, i, last_v=None):
    f = Fill()
    for F in range(5):
        f.add(3*F, read_K(e, i, F + 3))
    sm = softmax_half(e, 0, i % 2)
    for p in range(14, 24): f.add(p, sm, 2 if p >= 16 else 1)
    if last_v is not None:
        g = chain(read_V(e, last_v, 0), read_V(e, last_v, 1), read_V(e, last_v, 2))
        f.spread(g, range(15, 21))
    for m in range(24):
        F, j = divmod(m, 3); t, s = divmod(F, 4)
        if j == 0: e.wait_lg(('Kf', i, F))
        d = R('v', sreg(j, t), 4)
        e.mfma(d, R('a', kbuf(F), 4), R('v', qreg(j, s), 4), 0 if s == 0 else d)
        f.emit(m)
    run(sm)

def part_B(e, cfg, i, dmas, ndma, do_pv=True, do_sm=True, next_k=True):
    f = Fill()
    sm = softmax_half(e, 1, i % 2) if do_sm else iter(())
    kg = chain(read_K(e, i + 1, 0), read_K(e, i + 1, 1), read_K(e, i + 1, 2)) if next_k else iter(())
    if not do_pv:
        for _ in range(ndma): step(dmas)
        run(kg); run(sm)
        return
    f.spread(dmas, list(range(0, ndma)))
    f.spread(sm, range(2, 20))
    for u in range(5):
        g = read_V(e, i - 1, u + 3)
        f.add(3 + 3*u, g); f.add(4 + 3*u, g)
    f.spread(kg, [19, 21, 23])
    buf = (i - 1) % 2
    first = (i - 1 == 0)
    for m in range(27):
        if m < 3:
            d = R('a', AL + 4*m, 4)
            e.mfma(d, R('a', AONE, 4), R('v', preg(buf, m), 4), 0 if first else d)
        else:
            u, j = divmod(m - 3, 3)
            if j == 0: e.wait_lg(('Vf', i - 1, u))
            d = acc(j, u)
            e.mfma(d, R('a', vbuf(u), 4), R('v', preg(buf, j), 4), 0 if first else d)
        f.emit(m)
    run(sm); run(kg); run(dmas)

def dma_wo(e, cfg, q):
    slot = KRING[(11 + q) % 5] * 8192
    e.salu('s_add_u32', 'm0', sW2K, slot)
    if q == 2: e.salu('s_mov_b32', sOFF3, 8*64)
    else:
        e.salu('s_lshl_b32', sOFF3, sWV, 6)
        if q == 1: e.salu('s_add_u32', sOFF3, sOFF3, 4*64)
    e.dma(f'v{VW}', SWO, sOFF3, 0, ('WO', q), cfg.pol_wo); yield
    e.salu('s_add_u32', sOFF3, sOFF3, 16*1152 - 1024)
    e.dma(f'v{VW}', SWO, sOFF3, 1024, ('WO', q), cfg.pol_wo); yield

def wo_setup(e):
    e.salu('s_lshl_b32', sT, sH, 2); e.salu('s_lshr_b32', 's33', sB, 1); e.salu('s_add_u32', sT, sT, 's33')
    e.salu('s_mul_i32', 's34', sT, 32*1152)
    e.salu('s_and_b32', 's33', sB, 1); e.salu('s_mul_i32', 's35', 's33', 576)
    e.salu('s_add_u32', 's34', 's34', 's35')
    e.salu('s_add_u32', 's56', 's16', 's34'); e.salu('s_addc_u32', 's57', 's17', 0)
    e.salu('s_sub_u32', 's58', 4718592, 's34'); e.salu('s_mov_b32', 's59', '0x20000')
    e.salu('s_lshl_b32', 's34', sBR, 7); e.salu('s_add_u32', 's34', 's34', sT); e.salu('s_mul_i32', 's34', 's34', 36)
    e.salu('s_mul_i32', 's35', 's33', 18); e.salu('s_add_u32', 's34', 's34', 's35'); e.salu('s_lshl_b32', 's34', 's34', 10)
    e.salu('s_add_u32', 's34', 's34', WS_WF)
    e.salu('s_add_u32', 's60', 's30', 's34'); e.salu('s_addc_u32', 's61', 's31', 0)
    e.salu('s_mov_b32', 's62', 18*1024); e.salu('s_mov_b32', 's63', '0x20000')
    e.salu('s_lshl_b32', 's34', sBR, 4); e.salu('s_lshl_b32', 's35', sB, 1); e.salu('s_add_u32', 's34', 's34', 's35')
    e.salu('s_mul_i32', 's34', 's34', 768); e.salu('s_mul_i32', 's35', sH, 24); e.salu('s_add_u32', 's34', 's34', 's35')
    e.salu('s_lshl_b32', 's34', 's34', 10)
    e.salu('s_add_u32', 's52', 's30', 's34'); e.salu('s_addc_u32', 's53', 's31', 0)
    e.salu('s_sub_u32', 's54', WS_OF_BYTES, 's34'); e.salu('s_mov_b32', 's55', '0x20000')
    L = f'v{VL}'
    e.valu('v_lshrrev_b32', f'v{VW}', 2, L)
    e.valu('v_mul_u32_u24', f'v{VW}', 1152, f'v{VW}')
    e.valu('v_and_b32', 'v143', 3, L)
    e.valu('v_lshl_add_u32', f'v{VW}', 'v143', 4, f'v{VW}')

def wo_repack(e, cfg):
    e.comment('---- wo repack')
    L = f'v{VL}'
    e.valu('v_lshrrev_b32', 'v96', 2, L); e.valu('v_lshlrev_b32', 'v96', 6, 'v96')
    e.valu('v_and_b32', 'v97', 3, L); e.valu('v_lshl_add_u32', 'v96', 'v97', 3, 'v96')
    e.valu('v_add_u32', 'v96', sW2K, 'v96')
    e.valu('v_lshlrev_b32', 'v97', 4, L)
    n = 0
    for q in range(3):
        e.wait_vm(('WO', q))
        slot = KRING[(11 + q) % 5] * 8192
        for ee in range(2):
            b = 100 + 4*(2*q + ee)
            e.ds_read('ds_read_b64_tr_b16', R('v', b, 2), 'v96', slot + ee*32, ('wof', q, ee))
            e.ds_read('ds_read_b64_tr_b16', R('v', b+2, 2), 'v96', slot + ee*32 + 1024, ('wof', q, ee))
    for q in range(3):
        if q == 2: e.salu('s_mov_b32', sOFF3, 16*1024)
        else:
            e.salu('s_lshl_b32', sOFF3, sWV, 11)
            if q == 1: e.salu('s_add_u32', sOFF3, sOFF3, 8*1024)
        for ee in range(2):
            b = 100 + 4*(2*q + ee)
            e.wait_lg(('wof', q, ee))
            e.vstore('buffer_store_dwordx4', R('v', b, 4), 'v97', SWF, sOFF3, ee*1024, ('WFst',), cfg.pol_wf)

def o_epilogue(e, cfg, check):
    e.comment('---- O epilogue')
    L = f'v{VL}'
    e.valu('v_lshlrev_b32', f'v{VW}', 4, L)
    for j in range(3):
        e.valu('v_accvgpr_read_b32', f'v{96+j}', f'a{AL+4*j}')
    if check:
        e.salu('s_mov_b32', sLO, f32hex(2.0 ** -40)); e.salu('s_mov_b32', sHI, f32hex(2.0 ** 40))
        e.salu('s_mov_b64', 's[32:33]', -1)
        for j in range(3):
            e.vcmp('v_cmp_lt_f32', 'vcc', sLO, f'v{96+j}'); e.salu('s_and_b64', 's[32:33]', 's[32:33]', 'vcc')
            e.vcmp('v_cmp_gt_f32', 'vcc', sHI, f'v{96+j}'); e.salu('s_and_b64', 's[32:33]', 's[32:33]', 'vcc')
        e.ins('s_cmp_eq_u64 s[32:33], exec', 'salu', ['s32', 's33'], [])
        e.salu('s_cselect_b32', sBAD, 0, 1)
    for j in range(3):
        e.valu('v_rcp_f32', f'v{96+j}', f'v{96+j}')
    for j in range(3):
        e.salu('s_mul_i32', sT, sWV, 3); e.salu('s_add_u32', sT, sT, j)
        e.scmp('s_cmp_ge_u32', sT, 6)
        e.salu('s_cselect_b32', 's34', 768 - 6, 0)
        e.salu('s_add_u32', sT, sT, 's34'); e.salu('s_lshl_b32', sT, sT, 10)
        for p in range(4):
            base = ACC + (8*j + 2*p)*4
            tmp = 100 + 4*((4*j + p) % 6)
            for r in range(8): e.valu('v_mul_f32', f'v{base+r}', f'v{96+j}', f'v{base+r}')
            for r in range(4): e.valu('v_cvt_pk_bf16_f32', f'v{tmp+r}', f'v{base+2*r}', f'v{base+2*r+1}')
            e.salu('s_add_u32', sOFF, sT, p*6144)
            e.vstore('buffer_store_dwordx4', R('v', tmp, 4), f'v{VW}', SO, sOFF, 0, ('Ost',), cfg.pol_o)

def slow_path(e, cfg):
    e.comment('==== slow path: true row max')
    e.raw('L_k1_slow:')
    e.reset_hist(); e.nop(8)
    e.wait_vm_all(); e.wait_lg_all(); e.barrier()
    MX = 96 + 0
    mx = [f'v{P0+20+j}' for j in range(3)]
    for j in range(3): e.valu('v_mov_b32', mx[j], '0xff800000')
    def load_tile(kind, slot):
        srd = SK if kind == 'K' else SV
        e.salu('s_add_u32', 'm0', sW2K, slot*8192)
        e.dma(f'v{VKV0}', srd, sOFF, 0, (kind, 'slow'), cfg.pol_kv)
        e.dma(f'v{VKV1}', srd, sOFF, 1024, (kind, 'slow'), cfg.pol_kv)
    def qk():
        for F in range(8):
            t, s = divmod(F, 4)
            e.ds_read('ds_read_b128', R('a', AK, 4), f'v{VK+s}', t*4096, 'kk')
            e.wait_lg('kk')
            for j in range(3):
                d = R('v', sreg(j, t), 4)
                e.mfma(d, R('a', AK, 4), R('v', qreg(j, s), 4), 0 if s == 0 else d)
            e.nop(2)
    e.salu('s_mov_b32', sI, 0)
    e.raw('L_k1_p1:')
    e.salu('s_lshl_b32', sOFF, sI, 13)
    load_tile('K', 0)
    e.wait_vm_all(); e.barrier()
    qk()
    for j in range(3):
        for t in range(2):
            s = sreg(j, t)
            e.valu('v_max3_f32', mx[j], mx[j], f'v{s}', f'v{s+1}')
            e.valu('v_max3_f32', mx[j], mx[j], f'v{s+2}', f'v{s+3}')
    e.barrier()
    e.salu('s_add_u32', sI, sI, 1); e.scmp('s_cmp_lt_u32', sI, 16); e.raw('    s_cbranch_scc1 L_k1_p1')
    e.nop(4)
    for j in range(3):
        e.valu('v_mov_b32', 'v143', mx[j]); e.perm('v_permlane32_swap_b32', mx[j], 'v143'); e.valu('v_max_f32', mx[j], mx[j], 'v143')
        e.valu('v_mov_b32', 'v143', mx[j]); e.perm('v_permlane16_swap_b32', mx[j], 'v143'); e.valu('v_max_f32', mx[j], mx[j], 'v143')
    for r in range(96): e.valu('v_mov_b32', f'v{ACC+r}', 0)
    for r in range(12): e.valu('v_accvgpr_write_b32', f'a{AL+r}', 0)
    e.salu('s_mov_b32', sI, 0)
    e.raw('L_k1_p2:')
    e.salu('s_lshl_b32', sOFF, sI, 13)
    load_tile('K', 0); load_tile('V', 2)
    e.wait_vm_all(); e.barrier()
    qk()
    e.nop(8)
    for j in range(3):
        for t in range(2):
            s = sreg(j, t); p = preg(0, j) + 2*t
            for r in range(4): e.valu('v_sub_f32', f'v{s+r}', f'v{s+r}', mx[j])
            for r in range(4): e.valu('v_exp_f32', f'v{s+r}', f'v{s+r}')
            e.valu('v_cvt_pk_bf16_f32', f'v{p}', f'v{s}', f'v{s+1}')
            e.valu('v_cvt_pk_bf16_f32', f'v{p+1}', f'v{s+2}', f'v{s+3}')
    for j in range(3):
        d = R('a', AL + 4*j, 4)
        e.mfma(d, R('a', AONE, 4), R('v', preg(0, j), 4), d)
    for u in range(8):
        e.ds_read('ds_read_b64_tr_b16', R('a', AV, 2), f'v{VT+u}', 2*8192 - VBIAS, 'vv')
        e.ds_read('ds_read_b64_tr_b16', R('a', AV+2, 2), f'v{VT+u}', 2*8192 - VBIAS + 4096, 'vv')
        e.wait_lg('vv')
        for j in range(3):
            e.mfma(acc(j, u), R('a', AV, 4), R('v', preg(0, j), 4), acc(j, u))
        e.nop(2)
    e.barrier()
    e.salu('s_add_u32', sI, sI, 1); e.scmp('s_cmp_lt_u32', sI, 16); e.raw('    s_cbranch_scc1 L_k1_p2')
    e.nop(8)
    o_epilogue(e, cfg, check=False)
    e.wait_vm_all()
    e.raw('    s_endpgm')

def build(cfg, name='attn_kernel'):
    e = Emitter()
    prologue(e, cfg, name)
    run(dma_W(e, cfg, 0)); run(dma_X(e, cfg, 0)); run(dma_W(e, cfg, 1)); run(dma_W(e, cfg, 2)); run(dma_X(e, cfg, 1))
    e.valu('v_mov_b32', 'v1', '0x3f803f80')
    for r in range(4): e.valu('v_accvgpr_write_b32', f'a{AONE+r}', 'v1')
    e.wait_vm(('W', 0), ('X', 0)); e.barrier()
    run(read_x(e, 0))
    for u in range(4): run(read_W(e, 0, u))
    for s in range(18): qproj_body(e, cfg, s)
    e.wait_vm(('K', 0)); e.barrier()
    for F in range(3): run(read_K(e, 0, F))
    run(dma_KV(e, cfg, 'K', 4))
    wo_setup(e)
    q_epilogue(e)
    part_A(e, cfg, 0)
    for i in range(16):
        e.comment(f'---- attention body {i}')
        tags = [('V', i)] + ([('K', i + 1)] if i + 1 <= 15 else [])
        e.wait_vm(*tags); e.barrier()
        dm = []; n = 0
        if i + 5 <= 15: dm.append(dma_KV(e, cfg, 'K', i + 5)); n += 2
        if 4 <= i + 3 <= 15: dm.append(dma_KV(e, cfg, 'V', i + 3)); n += 2
        if 11 <= i <= 13: dm.append(dma_wo(e, cfg, i - 11)); n += 2
        part_B(e, cfg, i, chain(*dm), n, do_pv=(i >= 1), do_sm=True, next_k=(i + 1 <= 15))
        if i + 1 <= 15:
            part_A(e, cfg, i + 1, last_v=i)
        else:
            for u in range(3): run(read_V(e, 15, u))
    part_B(e, cfg, 16, iter(()), 0, do_pv=True, do_sm=False, next_k=False)
    o_epilogue(e, cfg, check=True)
    wo_repack(e, cfg)
    e.valu('v_mov_b32', 'v96', sBAD)
    e.valu('v_mov_b32', 'v97', FLAG_LDS)
    e.salu('s_lshl_b32', sT, sWV, 2)
    e.valu('v_add_u32', 'v98', sT, 'v97')
    e.ds_write('ds_write_b32', 'v98', 'v96', 0, 'flag')
    e.wait_lg_all(); e.barrier()
    e.ds_read('ds_read_b128', R('v', 100, 4), 'v97', 0, 'flag'); e.wait_lg_all()
    e.valu('v_or_b32', 'v100', 'v100', 'v101'); e.valu('v_or_b32', 'v102', 'v102', 'v103'); e.valu('v_or_b32', 'v100', 'v100', 'v102')
    e.rfl(sBAD, 'v100')
    e.scmp('s_cmp_lg_u32', sBAD, 0)
    e.raw('    s_cbranch_scc1 L_k1_slow')
    e.raw('L_k1_done:')
    e.raw('    s_endpgm')
    slow_path(e, cfg)
    return e
```

```python
from emit import Emitter, R
from k1 import WS_OF, WS_WF, WS_OF_BYTES, WS_WF_BYTES, run

class Cfg2:
    nst = 4
    pol_o = ''; pol_w = ''; pol_out = ''

def body(e, cfg, NC, tag):
    NST = cfg.nst
    NF = 6 + NC
    def acc(rt, ct): return R('v', (rt*NC + ct)*4, 4)
    def ofr(st, rt): return R('a', st*44 + rt*4, 4)
    def wfr(st, ct): return R('a', st*44 + 24 + ct*4, 4)
    VA = 'v200'
    sO = 's40'; sW = 's41'
    def loads(i):
        st = i % NST
        e.salu('s_add_u32', sO, 's44', i*4*6144)
        e.salu('s_add_u32', sW, 's45', i*4*36864)
        for rt in range(6):
            if rt == 4: e.salu('s_add_u32', sO, sO, 4096)
            e.vload('buffer_load_dwordx4', ofr(st, rt), VA, 's[8:11]', sO, (rt % 4)*1024, (tag, i), cfg.pol_o); yield
        for ct in range(NC):
            if ct == 4: e.salu('s_add_u32', sW, sW, 4096)
            e.vload('buffer_load_dwordx4', wfr(st, ct), VA, 's[12:15]', sW, (ct % 4)*1024, (tag, i), cfg.pol_w); yield
    for i in range(NST - 1): run(loads(i))
    for i in range(32):
        e.comment(f'k-step {i}')
        e.wait_vm((tag, i))
        lg = loads(i + NST - 1) if i + NST - 1 < 32 else iter(())
        m = 0
        for rt in range(6):
            for ct in range(NC):
                d = acc(rt, ct)
                e.mfma(d, wfr(i % NST, ct), ofr(i % NST, rt), 0 if i == 0 else d)
                if m % 2 == 1 and m >= 1:
                    try: next(lg)
                    except StopIteration: pass
                m += 1
        run(lg)
    e.nop(8)
    NT = 6*NC
    e.valu('v_lshlrev_b32', 'v201', 4, 'v202')
    for w in range(4):
        e.scmp('s_cmp_eq_u32', 's3', w)
        e.raw(f'    s_cbranch_scc0 L_{tag}_w{w}_skip')
        for T in range(NT):
            own = T % 4
            if own == w: continue
            slot = (w - own - 1) % 4
            off = (T*3 + slot)*1024
            a = 'v201'
            if off >= 65536:
                a = 'v203'; off -= 65536
            e.ds_write('ds_write_b128', a, R('v', T*4, 4), off, 'red')
        e.raw(f'L_{tag}_w{w}_skip:')
    e.wait_lg_all(); e.barrier()
    for w in range(4):
        e.scmp('s_cmp_eq_u32', 's3', w)
        e.raw(f'    s_cbranch_scc0 L_{tag}_r{w}_skip')
        tiles = [T for T in range(NT) if T % 4 == w]
        for n, T in enumerate(tiles):
            for slot in range(3):
                off = (T*3 + slot)*1024; a = 'v201'
                if off >= 65536: a = 'v203'; off -= 65536
                e.ds_read('ds_read_b128', R('v', 128 + (n % 2)*12 + slot*4, 4), a, off, ('rd', T))
            e.wait_lg(('rd', T))
            for slot in range(3):
                for r in range(4):
                    e.valu('v_add_f32', f'v{T*4+r}', f'v{T*4+r}', f'v{128 + (n % 2)*12 + slot*4 + r}')
            t = 160 + (n % 4)*2
            e.valu('v_cvt_pk_bf16_f32', f'v{t}', f'v{T*4}', f'v{T*4+1}')
            e.valu('v_cvt_pk_bf16_f32', f'v{t+1}', f'v{T*4+2}', f'v{T*4+3}')
            rt, ct = divmod(T, NC)
            e.salu('s_mov_b32', 's42', rt*16*2304 + ct*32)
            e.vstore('buffer_store_dwordx2', R('v', t, 2), 'v204', 's[16:19]', 's42', 0, 'out', cfg.pol_out)
        e.raw(f'L_{tag}_r{w}_skip:')
    e.raw('    s_endpgm')

def build(cfg, name='oproj_kernel'):
    e = Emitter()
    e.raw(f'{name}:')
    e.scmp('s_cmp_ge_u32', 's2', 256); e.raw('    s_cbranch_scc1 L_k2_done')
    e.raw('    s_load_dwordx2 s[20:21], s[0:1], 80')
    e.raw('    s_load_dwordx2 s[22:23], s[0:1], 96')
    e.valu('v_lshrrev_b32', 'v1', 6, 'v0')
    e.valu('v_and_b32', 'v202', 63, 'v0')
    e.rfl('s3', 'v1')
    e.valu('v_lshlrev_b32', 'v200', 4, 'v202')
    e.valu('v_add_u32', 'v203', 65536, 'v200')
    e.salu('s_and_b32', 's4', 's2', 7); e.salu('s_lshr_b32', 's5', 's2', 3)
    e.salu('s_lshr_b32', 's6', 's4', 2)
    e.salu('s_and_b32', 's4', 's4', 3); e.salu('s_lshl_b32', 's4', 's4', 2)
    e.salu('s_and_b32', 's7', 's5', 3); e.salu('s_add_u32', 's4', 's4', 's7')
    e.salu('s_lshr_b32', 's5', 's5', 2)
    e.salu('s_mul_i32', 's24', 's5', 5); e.salu('s_lshl_b32', 's25', 's5', 2); e.salu('s_add_u32', 's25', 's25', 4)
    e.scmp('s_cmp_lt_u32', 's5', 4); e.salu('s_cselect_b32', 's24', 's24', 's25')
    e.valu('v_and_b32', 'v2', 15, 'v202'); e.valu('v_mul_u32_u24', 'v2', 2304, 'v2')
    e.valu('v_lshrrev_b32', 'v3', 4, 'v202'); e.valu('v_lshl_add_u32', 'v204', 'v3', 3, 'v2')
    e.ins('s_waitcnt lgkmcnt(0)', 'wait')
    e.salu('s_lshl_b32', 's26', 's6', 4); e.salu('s_add_u32', 's26', 's26', 's4'); e.salu('s_mul_i32', 's26', 's26', 768*1024)
    e.salu('s_add_u32', 's8', 's22', 's26'); e.salu('s_addc_u32', 's9', 's23', 0)
    e.salu('s_mov_b32', 's10', 768*1024); e.salu('s_mov_b32', 's11', '0x20000')
    e.salu('s_mul_i32', 's26', 's6', 128*36); e.salu('s_add_u32', 's26', 's26', 's24'); e.salu('s_lshl_b32', 's26', 's26', 10)
    e.salu('s_sub_u32', 's27', WS_WF_BYTES, 's26')
    e.salu('s_add_u32', 's26', 's26', WS_WF)
    e.salu('s_add_u32', 's12', 's22', 's26'); e.salu('s_addc_u32', 's13', 's23', 0)
    e.salu('s_mov_b32', 's14', 's27'); e.salu('s_mov_b32', 's15', '0x20000')
    e.salu('s_mul_i32', 's26', 's4', 96*2304); e.salu('s_mul_i32', 's27', 's6', 1152); e.salu('s_add_u32', 's26', 's26', 's27')
    e.salu('s_lshl_b32', 's27', 's24', 5); e.salu('s_add_u32', 's26', 's26', 's27')
    e.salu('s_sub_u32', 's27', 1536*2304, 's26')
    e.salu('s_add_u32', 's16', 's20', 's26'); e.salu('s_addc_u32', 's17', 's21', 0)
    e.salu('s_mov_b32', 's18', 's27'); e.salu('s_mov_b32', 's19', '0x20000')
    e.salu('s_mul_i32', 's44', 's3', 6144); e.salu('s_mul_i32', 's45', 's3', 36864)
    e.scmp('s_cmp_lt_u32', 's5', 4)
    e.raw('    s_cbranch_scc0 L_k2_nc4')
    body(e, cfg, 5, 'c5')
    e.raw('L_k2_nc4:')
    e.reset_hist(); e.vm = []; e.lg = []
    body(e, cfg, 4, 'c4')
    e.raw('L_k2_done:')
    e.raw('    s_endpgm')
    return e
```

```python
import sys, os
sys.path.insert(0, os.path.dirname(__file__))
import k1, k2
NAME = 'concat_heads__mha_block_cached__mha_block_cached__near_ridge'
REF = open(f'cdna_kernels/{NAME}.s.ref').read()
def header():
    lines = []
    for l in REF.split('\n'):
        if l.startswith('; Override') or l.startswith('; grid=') or l.startswith('; @launch'): continue
        if not l.startswith(';'): break
        lines.append(l)
    return lines
def kd(name, nv, acc, ns=96):
    return f'''.section .rodata,"a"
.p2align 6
.amdhsa_kernel {name}
  .amdhsa_next_free_vgpr {nv}
  .amdhsa_next_free_sgpr {ns}
  .amdhsa_accum_offset {acc}
  .amdhsa_group_segment_fixed_size 0
  .amdhsa_kernarg_size 104
  .amdhsa_user_sgpr_count 2
  .amdhsa_user_sgpr_kernarg_segment_ptr 1
  .amdhsa_system_sgpr_workgroup_id_x 1
.end_amdhsa_kernel
'''
def make(c1=None, c2=None, out=None):
    c1 = c1 or k1.Cfg(); c2 = c2 or k2.Cfg2()
    e1 = k1.build(c1, 'attn_kernel'); e2 = k2.build(c2, 'oproj_kernel')
    t = '\n'.join(header()) + '\n'
    t += '; @launch kernel=attn_kernel grid=(512,1,1) block=(256,1,1) lds=81920\n'
    t += '; @launch kernel=oproj_kernel grid=(256,1,1) block=(256,1,1) lds=98304\n'
    t += '.amdgcn_target "amdgcn-amd-amdhsa--gfx950"\n.text\n'
    for nm, e in (('attn_kernel', e1), ('oproj_kernel', e2)):
        t += f'.globl {nm}\n.p2align 8\n.type {nm},@function\n' + e.text()
    t += kd('attn_kernel', 256, 208) + '.text\n' + kd('oproj_kernel', 512, 256)
    out = out or f'cdna_kernels/{NAME}.s'
    open(out, 'w').write(t)
    print(out, 'k1 insts', e1.ninst, 'nops', e1.nnop, '| k2 insts', e2.ninst, 'nops', e2.nnop, '| bytes', len(t))
    return out
if __name__ == '__main__':
    make()
```
